```python
import torch

def _softmax(x, axis=-1):
    return torch.softmax(x, dim=axis)
def _gelu(x):
    return torch.nn.functional.gelu(x, approximate="tanh")
def _silu(x):
    return torch.nn.functional.silu(x)
def _sigmoid(x):
    return torch.sigmoid(x)
def _layernorm(x, axis=-1, eps=1e-5):
    m = x.mean(dim=axis, keepdim=True)
    v = x.var(dim=axis, keepdim=True, unbiased=False)
    return (x - m) / torch.sqrt(v + eps)
def _scatter_add(tgt, idx, src, axis=0):
    return tgt.clone().index_add_(axis, idx, src)
def _segment_sum(src, seg, n):
    out = torch.zeros((n,) + src.shape[1:], dtype=src.dtype)
    return out.index_add_(0, seg, src)
def _pad(x, pw):
    flat = tuple(v for pair in reversed(pw) for v in pair)
    return torch.nn.functional.pad(x, flat)

kernel_name = 'interleave_layers__sliding_local_dilated__sliding_block__prompt'

def setup_inputs():

    _w = (lambda a: (lambda t: t.to(torch.bfloat16) if t.is_floating_point() else t)(torch.as_tensor(a)))
    def _A_setup():
        B, S, D = 1, 2048, 640
        return {
            "x": _w((lambda *s: torch.randn(*s, dtype=torch.bfloat16) * 0.05)(B, S, D)),
            "wqkv": _w((lambda *s: torch.randn(*s, dtype=torch.bfloat16) * 0.05)(D, 3 * D)),
            "wo": _w((lambda *s: torch.randn(*s, dtype=torch.bfloat16) * 0.05)(D, D)),
        }
    _A_in = _A_setup()

    def _B_setup():
        B, S, D = 1, 2048, 640
        return {
            "x": _w((lambda *s: torch.randn(*s, dtype=torch.bfloat16) * 0.05)(B, S, D)),
            "wqkv": _w((lambda *s: torch.randn(*s, dtype=torch.bfloat16) * 0.05)(D, 3 * D)),
            "wo": _w((lambda *s: torch.randn(*s, dtype=torch.bfloat16) * 0.05)(D, D)),
        }
    _B_in = _B_setup()

    return {
        "A_x": _A_in["x"],
        "A_wqkv": _A_in["wqkv"],
        "A_wo": _A_in["wo"],
        "B_x": _B_in["x"],
        "B_wqkv": _B_in["wqkv"],
        "B_wo": _B_in["wo"],
    }

def reference(A_x, A_wqkv, A_wo, B_x, B_wqkv, B_wo):
    def _A_ref(x, wqkv, wo):
        B, S, D = x.shape
        H = 32; Dh = D // H
        W, dil = 8, 2
        qkv = (lambda x, *d: x.permute(*d))((x @ wqkv).reshape(B, S, 3, H, Dh), 2, 0, 3, 1, 4)
        q, k, v = qkv[0], qkv[1], qkv[2]
        scale = Dh ** -0.5
        pos = torch.arange(S)
        off = torch.arange(W) * dil
        idx = pos[:, None] - off[None, :]
        mask = idx >= 0
        idx_c = torch.where(mask, idx, 0).reshape(-1)
        kg = k[:, :, idx_c, :].reshape(B, H, S, W, Dh)
        vg = v[:, :, idx_c, :].reshape(B, H, S, W, Dh)
        logits = torch.einsum("bhsd,bhswd->bhsw", q, kg) * scale
        logits = torch.where(mask[None, None, :, :], logits, -1e9)
        attn = _softmax(logits, axis=-1)
        o = torch.einsum("bhsw,bhswd->bhsd", attn, vg)
        return (lambda x, *d: x.permute(*d))(o, 0, 2, 1, 3).reshape(B, S, D) @ wo

    def _B_ref(x, wqkv, wo):
        B, S, D = x.shape
        H = 32; Dh = D // H; W = 256
        qkv = (lambda x, *d: x.permute(*d))((x @ wqkv).reshape(B, S, 3, H, Dh), 2, 0, 3, 1, 4)
        q, k, v = qkv[0], qkv[1], qkv[2]
        scores = torch.einsum("bhqd,bhkd->bhqk", q, k) * (Dh ** -0.5)
        idx = torch.arange(S)
        mask = (idx[:, None] - idx[None, :] >= 0) & (idx[:, None] - idx[None, :] < W)
        scores = torch.where(mask[None, None], scores, -1e9)
        p = _softmax(scores, axis=-1)
        o = torch.einsum("bhqk,bhkd->bhqd", p, v)
        return (lambda x, *d: x.permute(*d))(o, 0, 2, 1, 3).reshape(B, S, D) @ wo

    x = A_x
    x = x + _A_ref(_layernorm(x, axis=-1), A_wqkv, A_wo)
    x = x + _B_ref(_layernorm(x, axis=-1), B_wqkv, B_wo)
    x = x + _A_ref(_layernorm(x, axis=-1), A_wqkv, A_wo)
    x = x + _B_ref(_layernorm(x, axis=-1), B_wqkv, B_wo)
    return x
```

```python
import re

REG_RE = re.compile(r'^(-?)(abs\()?([vas])(\d+)\)?$')
RNG_RE = re.compile(r'^(-?)([vas])\[(\d+):(\d+)\]$')

def regs_of(tok):
    tok = tok.strip()
    m = REG_RE.match(tok)
    if m: return {(m.group(3), int(m.group(4)))}
    m = RNG_RE.match(tok)
    if m: return {(m.group(2), i) for i in range(int(m.group(3)), int(m.group(4)) + 1)}
    if tok in ('vcc', 'vcc_lo', 'vcc_hi'): return {('x', 'vcc')}
    if tok in ('exec', 'exec_lo', 'exec_hi'): return {('x', 'exec')}
    if tok == 'm0': return {('x', 'm0')}
    return set()

TRANS = ('v_exp_f32', 'v_log_f32', 'v_rcp_f32', 'v_rsq_f32', 'v_sqrt_f32', 'v_sin_f32', 'v_cos_f32')

class Ins:
    __slots__ = ('text', 'op', 'kind', 'defs', 'uses', 'passes', 'srcA', 'srcB', 'srcC', 'wide_store_data', 'is_lds_dma', 'nop', 'is_label')
    def __init__(self, text):
        self.text = text
        t = text.split(';')[0].strip()
        self.is_label = t.endswith(':')
        self.defs = set(); self.uses = set(); self.passes = 0
        self.srcA = self.srcB = self.srcC = set()
        self.wide_store_data = set(); self.is_lds_dma = False; self.nop = 0
        if self.is_label or not t or t.startswith('.'):
            self.op = ''; self.kind = 'NONE'; return
        parts = t.split(None, 1)
        op = parts[0]; self.op = op
        rest = parts[1] if len(parts) > 1 else ''
        ops = [x.strip() for x in rest.split(',')] if rest else []
        if ops:
            last = ops[-1].split()
            mods = last[1:]
            ops[-1] = last[0] if last else ''
        else:
            mods = []
        R = [regs_of(o) for o in ops]
        base = op.replace('_e32', '').replace('_e64', '')
        if op.startswith('v_mfma'):
            self.kind = 'MFMA'
            self.passes = 8 if '32x32x16' in op else 4 if '16x16x32' in op else None
            assert self.passes
            self.defs = R[0]; self.srcA = R[1]; self.srcB = R[2]; self.srcC = R[3]
            self.uses = R[1] | R[2] | R[3]
        elif op.startswith('v_'):
            self.kind = 'TRANS' if base in TRANS else 'VALU'
            if base.startswith('v_cmp'):
                self.defs = R[0]; self.uses = set().union(*R[1:])
            elif base in ('v_permlane32_swap_b32', 'v_permlane16_swap_b32', 'v_swap_b32'):
                self.defs = R[0] | R[1]; self.uses = R[0] | R[1]
            elif base in ('v_dot2c_f32_bf16', 'v_fmac_f32'):
                self.defs = R[0]; self.uses = set().union(*R)
            elif base == 'v_cndmask_b32':
                self.defs = R[0]; self.uses = set().union(*R[1:])
                if len(ops) == 3: self.uses |= {('x', 'vcc')}
            elif base in ('v_add_co_u32', 'v_sub_co_u32'):
                self.defs = R[0] | R[1]; self.uses = set().union(*R[2:])
            elif base in ('v_addc_co_u32',):
                self.defs = R[0] | R[1]; self.uses = set().union(*R[2:])
            else:
                self.defs = R[0]; self.uses = set().union(*R[1:]) if len(R) > 1 else set()
        elif op.startswith('ds_'):
            self.kind = 'DS'
            if op.startswith('ds_read') or op.startswith('ds_bpermute'):
                self.defs = R[0]; self.uses = set().union(*R[1:])
            else:
                self.uses = set().union(*R)
        elif op.startswith('buffer_') or op.startswith('global_'):
            self.kind = 'VMEM'
            if 'lds' in mods:
                self.is_lds_dma = True
                self.uses = set().union(*R) | {('x', 'm0')}
            elif '_load' in op:
                self.defs = R[0]; self.uses = set().union(*R[1:])
            elif '_store' in op:
                self.uses = set().union(*R)
                if 'dwordx4' in op or 'dwordx3' in op:
                    self.wide_store_data = R[0] if op.startswith('buffer_') else R[1]
            elif '_atomic' in op:
                self.uses = set().union(*R)
                if 'sc0' in mods: self.defs = R[0]
            else:
                raise ValueError(op)
        elif op.startswith('s_'):
            self.kind = 'SALU'
            if op == 's_nop':
                self.nop = int(ops[0], 0) + 1
            elif op.startswith('s_cmp') or op.startswith('s_cbranch') or op in ('s_branch', 's_waitcnt', 's_barrier', 's_endpgm', 's_sleep', 's_setprio', 's_bitcmp1_b32', 's_bitcmp0_b32'):
                self.uses = set().union(*R) if R else set()
            elif op.startswith('s_load') or op in ('s_memtime', 's_memrealtime'):
                self.kind = 'SMEM'; self.defs = R[0]; self.uses = set().union(*R[1:]) if len(R) > 1 else set()
            else:
                self.defs = R[0]; self.uses = set().union(*R[1:]) if len(R) > 1 else set()
                if 'saveexec' in op: self.defs |= {('x', 'exec')}
        else:
            raise ValueError('unknown op ' + op)

def isv(r): return r[0] in ('v', 'a')
def iss(r): return r[0] == 's' or r == ('x', 'vcc')

def required(prod, cons):
    need = 0
    pk, ck = prod.kind, cons.kind
    pvalu = pk in ('VALU', 'TRANS')
    cvalu = ck in ('VALU', 'TRANS')
    pv = {r for r in prod.defs if isv(r)}
    if pvalu:
        if ck == 'MFMA' and pv & cons.uses: need = max(need, 2)
        if cvalu:
            b = cons.op.replace('_e32', '').replace('_e64', '')
            if b in ('v_readfirstlane_b32', 'v_readlane_b32') and pv & cons.uses: need = max(need, 1)
            if b.startswith('v_permlane') and pv & cons.uses: need = max(need, 2)
            if 'dpp' in cons.text and pv & cons.uses: need = max(need, 2)
            if pk == 'TRANS' and ck != 'TRANS' and pv & cons.uses: need = max(need, 1)
        ps = {r for r in prod.defs if iss(r)}
        if ps:
            if ck == 'VMEM' and ps & cons.uses: need = max(need, 5)
            if cvalu and ps & cons.uses: need = max(need, 2)
            if cvalu and cons.op in ('v_readlane_b32', 'v_writelane_b32') and ps & cons.uses: need = max(need, 4)
        if pk == 'TRANS' and ck in ('DS', 'VMEM') and pv & cons.uses: need = max(need, 1)
    if pk == 'MFMA':
        P = prod.passes
        raw = {4: 8, 8: 12}[P]
        if ck == 'MFMA':
            if prod.defs & (cons.srcA | cons.srcB): need = max(need, raw)
            if prod.defs & cons.srcC:
                if prod.defs == cons.srcC and cons.passes == P: pass
                else: need = max(need, {4: 6, 8: 10}[P])
            if prod.defs & cons.defs and not (prod.defs == cons.defs): need = max(need, raw)
        elif cvalu:
            if prod.defs & (cons.uses | cons.defs): need = max(need, raw)
            if prod.srcC & cons.defs: need = max(need, {4: 3, 8: 7}[P])
        elif ck in ('DS', 'VMEM'):
            if prod.defs & (cons.uses | cons.defs): need = max(need, raw)
            if prod.srcC & cons.defs: need = max(need, {4: 3, 8: 7}[P])
    if prod.wide_store_data:
        if prod.wide_store_data & cons.defs: need = max(need, 2 if cvalu else 1)
    if pk == 'SALU' and ('x', 'm0') in prod.defs and cons.is_lds_dma: need = max(need, 1)
    if pk == 'SALU' and ('x', 'exec') in prod.defs and ck == 'MFMA': need = max(need, 4)
    return need

class Prog:
    def __init__(self):
        self.lines = []
        self.vm = 0
        self.lg = 0
        self.uid = 0
    def __call__(self, text):
        for t in text.split('\n'):
            t = t.strip()
            if not t: continue
            self.lines.append(t)
            op = t.split()[0]
            if op.startswith('buffer_') or op.startswith('global_'): self.vm += 1
            elif op.startswith('ds_'): self.lg += 1
    def c(self, text): self.lines.append('; ' + text)
    def label(self, name): self.lines.append(name + ':')
    def newlabel(self, base):
        self.uid += 1
        return f'L_{base}_{self.uid}'
    def vmtok(self): return self.vm
    def lgtok(self): return self.lg
    def wait_vm(self, tok):
        n = self.vm - tok
        self(f's_waitcnt vmcnt({min(n, 63)})')
    def wait_lg(self, tok):
        n = self.lg - tok
        self(f's_waitcnt lgkmcnt({min(n, 15)})')
    def finalize(self, verbose=False):
        out = []; window = []
        nn = 0
        snaps = {}
        for t in self.lines:
            ins = Ins(t)
            if ins.kind == 'NONE':
                if ins.is_label:
                    name = t.strip()[:-1]
                    for snap in snaps.pop(name, []):
                        cur = {id(p): (p, d) for p, d in window}
                        for p, d in snap:
                            if id(p) in cur:
                                if d < cur[id(p)][1]: cur[id(p)] = (p, d)
                            else:
                                cur[id(p)] = (p, d)
                        window = list(cur.values())
                out.append(t); continue
            need = 0
            for p, d in window:
                r = required(p, ins)
                if r - d > need: need = r - d
            while need > 0:
                k = min(need, 16)
                out.append(f's_nop {k-1}'); nn += k
                window = [(p, d + k) for p, d in window]
                need -= k
            out.append(t)
            step = ins.nop if ins.nop else 1
            window = [(p, d + step) for p, d in window if d + step < 20]
            window.append((ins, 0))
            if ins.op.startswith('s_cbranch') or ins.op == 's_branch':
                tgt = t.split()[1]
                snaps.setdefault(tgt, []).append(list(window))
        if verbose: print('inserted nop wait states:', nn)
        return out
```

```python
import sys
from asmlib import Prog

NAME = "interleave_layers__sliding_local_dilated__sliding_block__prompt"
STAMPS = '--stamps' in sys.argv
SPIN = 1 << 16

WS_NONCE = 0
WS_CNT = 0x1000
WS_F0 = 0x4000
WS_FKV = 0x8000
WS_ST = 0x20000; ST_SZ = 0x20000
WS_XP = 0x100000; XP_SZ = 0x280000
WS_OP = 0xB00000
WS_KV = 0x1500000; KV_SZ = 0x600000
WS_TS = 0x3000000
PLK = 6144
VB0 = 6 * PLK
PLV = 6208
LDS_CSP = 131072
LDS_CS = LDS_CSP + 2048
LDS_TOTAL = 163840
NEGBIG = 0xF149F2CA
QSCALE = (20 ** -0.5) * 1.4426950408889634

import struct
def f2u(x): return struct.unpack('<I', struct.pack('<f', x))[0]

SRD_W, SRD_WO, SRD_WS, SRD_IO = 's[4:7]', 's[8:11]', 's[12:15]', 's[16:19]'
sG, sJ, sW, sL = 's20', 's21', 's22', 's23'
sHALF, sCB = 's58', 's59'
sCNT = 's64'
sCSW = 's65'
sLO, sHI = 's[66:67]', 's[68:69]'
sSW0, sSW1, sJODD = 's[70:71]', 's[72:73]', 's[74:75]'
sEX = 's[62:63]'
vWdma = 'v232'
vT = ['v233', 'v234', 'v235', 'v236']
vTH = ['v237', 'v238', 'v239', 'v240']
vL16 = 'v241'
vWo5 = ['v242', 'v243', 'v244', 'v245', 'v246']
vA0, vA1 = 'v247', 'v248'
vXst = 'v249'
vNonceOld = 'v250'
vL31, vHH, vL15, vG4 = 'v251', 'v252', 'v253', 'v254'
RES = 160

p = Prog()
stamp_idx = [0]
def stamp(name):
    if not STAMPS: return
    i = stamp_idx[0]; stamp_idx[0] += 1
    p.c(f'stamp {i} {name}')
    p('s_memtime s[96:97]')
    p('s_waitcnt lgkmcnt(0)')
    p(f's_lshl_b32 s98, s2, 2\ns_add_u32 s98, s98, {sW}\ns_lshl_b32 s98, s98, 9\ns_lshl_b32 s99, {sL}, 7\ns_add_u32 s98, s98, s99\ns_add_u32 s98, s98, {WS_TS + 4*i}')
    p('v_mov_b32 v230, s96\nv_mov_b32 v231, s98')
    p(f's_mov_b64 s[96:97], exec\ns_mov_b64 exec, 1\nbuffer_store_dword v230, v231, {SRD_WS}, 0 offen\ns_mov_b64 exec, s[96:97]')
    stamp_names.append(name)
stamp_names = []

def vr(a, n): return f'v[{a}:{a+n-1}]'
def ar(a, n): return f'a[{a}:{a+n-1}]'

def swap32_add(v, t):
    p(f'v_mov_b32 {t}, {v}')
    p(f'v_permlane32_swap_b32 {v}, {t}')
    p(f'v_add_f32 {v}, {v}, {t}')
def swap16_add(v, t):
    p(f'v_mov_b32 {t}, {v}')
    p(f'v_permlane16_swap_b32 {v}, {t}')
    p(f'v_add_f32 {v}, {v}, {t}')

def poll_loop(load, check):
    L = p.newlabel('poll'); D = p.newlabel('pdone')
    p(f's_mov_b32 s39, {SPIN}')
    p.label(L)
    p(load)
    p('s_waitcnt vmcnt(0)')
    p(check)
    p(f's_cbranch_scc1 {D}')
    p('s_sub_u32 s39, s39, 1\ns_cmp_lg_u32 s39, 0')
    p(f's_cbranch_scc1 {L}')
    p.label(D)

def group_exchange():
    S = p.newlabel('xskip')
    p('s_barrier')
    p(f's_add_u32 {sCNT}, {sCNT}, 16')
    p(f's_cmp_lg_u32 {sW}, 0\ns_cbranch_scc1 {S}')
    p(f's_lshl_b32 s28, {sG}, 8\ns_add_u32 s28, s28, {WS_CNT}')
    p(f's_mov_b64 {sEX}, exec\ns_mov_b64 exec, 1')
    p('v_mov_b32 v6, s28\nv_mov_b32 v7, 1')
    p(f'buffer_atomic_add v7, v6, {SRD_WS}, 0 offen sc1')
    poll_loop(f'buffer_load_dword v8, v6, {SRD_WS}, 0 offen sc1',
              f'v_readfirstlane_b32 s30, v8\ns_cmp_ge_u32 s30, {sCNT}')
    p(f's_mov_b64 exec, {sEX}')
    p.label(S)
    p('s_barrier')

def w_prefetch():
    S = p.newlabel('wpf_skip'); L = p.newlabel('wpf')
    p(f's_cmp_eq_u32 {sW}, 0\ns_cbranch_scc1 {S}')
    p(f's_sub_u32 s28, {sW}, 1')
    p('s_mul_i32 s29, s28, 15360')
    p('s_lshl_b32 s30, s28, 10')
    p.label(L)
    p('s_mov_b32 m0, s30')
    p('s_add_u32 s30, s30, 3072')
    p(f'buffer_load_dwordx4 {vWdma}, {SRD_W}, s29 offen lds')
    p('s_add_u32 s29, s29, 46080')
    p(f's_cmp_lt_u32 s30, 131072\ns_cbranch_scc1 {L}')
    p.label(S)

def wo_prefetch():
    S = p.newlabel('wo_skip'); L = p.newlabel('wo')
    p(f's_cmp_eq_u32 {sW}, 0\ns_cbranch_scc1 {S}')
    p(f's_sub_u32 s28, {sW}, 1')
    p('s_mul_i32 s29, s28, 40960')
    p(f's_mul_i32 s31, {sCB}, 160\ns_add_u32 s29, s29, s31')
    p('s_mul_i32 s30, s28, 5120')
    p.label(L)
    for i in range(5):
        p(f's_add_u32 m0, s30, {i*1024}')
        p(f'buffer_load_dwordx4 {vWo5[i]}, {SRD_WO}, s29 offen lds')
    p('s_add_u32 s29, s29, 122880\ns_add_u32 s30, s30, 15360')
    p(f's_cmp_lt_u32 s30, 102400\ns_cbranch_scc1 {L}')
    p.label(S)

def set_weight_srds():
    p(f's_bitcmp1_b32 {sL}, 0')
    p('s_cselect_b32 s4, s48, s42\ns_cselect_b32 s5, s49, s43')
    p('s_cselect_b32 s8, s50, s44\ns_cselect_b32 s9, s51, s45')
    p('s_mov_b32 s6, 2457600\ns_mov_b32 s7, 0x20000\ns_mov_b32 s10, 819200\ns_mov_b32 s11, 0x20000')

def publish_x(pk, final_label=None):
    pass

def prologue():
    p('s_cmp_ge_u32 s2, 256\ns_cbranch_scc1 L_end')
    p('s_load_dwordx16 s[40:55], s[0:1], 0')
    p('s_load_dwordx2 s[56:57], s[0:1], 64')
    p('v_lshrrev_b32 v1, 6, v0')
    p('v_and_b32 v0, 63, v0')
    p(f'v_readfirstlane_b32 {sW}, v1')
    p(f's_and_b32 s3, s2, 7\ns_lshr_b32 s28, s2, 3\ns_lshr_b32 s29, s28, 4\ns_lshl_b32 {sG}, s3, 1\ns_add_u32 {sG}, {sG}, s29')
    p(f's_and_b32 {sJ}, s28, 15\ns_and_b32 {sHALF}, {sJ}, 1\ns_lshr_b32 {sCB}, {sJ}, 1')
    p(f's_mov_b32 {sL}, 0\ns_mov_b32 {sCNT}, 0')
    p('s_mov_b32 s66, -1\ns_mov_b32 s67, 0\ns_mov_b32 s68, 0\ns_mov_b32 s69, -1')
    p(f's_bitcmp1_b32 {sJ}, 0')
    p(f's_cselect_b64 {sSW0}, {sLO}, {sHI}\ns_cselect_b64 {sSW1}, {sHI}, {sLO}\ns_cselect_b64 {sJODD}, -1, 0')
    p('s_waitcnt lgkmcnt(0)')
    p('s_mov_b32 s12, s56\ns_mov_b32 s13, s57\ns_mov_b32 s14, 0x10000000\ns_mov_b32 s15, 0x20000')
    p('s_load_dwordx2 s[26:27], s[56:57], 0')
    p('s_mov_b32 s16, s40\ns_mov_b32 s17, s41\ns_mov_b32 s18, 2621440\ns_mov_b32 s19, 0x20000')
    set_weight_srds()
    p(f'v_and_b32 {vL31}, 31, v0\nv_lshrrev_b32 {vHH}, 5, v0\nv_and_b32 {vL15}, 15, v0\nv_lshrrev_b32 {vG4}, 4, v0')
    p(f'v_lshlrev_b32 {vL16}, 4, v0')
    p(f'v_mul_u32_u24 v1, 1280, {vL15}\nv_lshlrev_b32 v2, 3, {vG4}\nv_add_u32 v1, v1, v2')
    p(f's_lshl_b32 s28, {sG}, 7\ns_lshl_b32 s29, {sHALF}, 6\ns_add_u32 s28, s28, s29\ns_lshl_b32 s29, {sW}, 4\ns_add_u32 s28, s28, s29')
    p(f's_mul_i32 s28, s28, 1280\ns_mul_i32 s29, {sCB}, 160\ns_add_u32 s28, s28, s29')
    for t in range(5):
        p(f'buffer_load_dwordx2 {vr(16+2*t,2)}, v1, {SRD_IO}, s28 offen offset:{32*t}')
    p(f'v_lshlrev_b32 v2, 2, {vG4}\nv_xor_b32 v2, {vL15}, v2\nv_min_u32 v2, 14, v2')
    p('v_mul_u32_u24 v3, 13, v2\nv_lshrrev_b32 v3, 6, v3')
    p('v_mul_u32_u24 v4, 5, v3\nv_sub_u32 v4, v2, v4')
    p('v_mul_u32_u24 v3, 1280, v3\nv_lshlrev_b32 v4, 4, v4\nv_add_u32 v3, v3, v4')
    p(f'v_mul_u32_u24 v4, 3840, {vG4}\nv_add_u32 v3, v3, v4')
    p(f's_mul_i32 s29, {sJ}, 80\nv_add_u32 {vWdma}, s29, v3')
    p(f'v_lshrrev_b32 v2, 2, {vL15}')
    p(f'v_lshlrev_b32 v3, 3, {vHH}\nv_add_u32 v3, v3, v2\nv_lshlrev_b32 v3, 8, v3')
    p(f'v_and_b32 v4, 1, {vG4}\nv_lshlrev_b32 v4, 5, v4\nv_add_u32 v3, v3, v4')
    p(f'v_and_b32 v4, 3, v0\nv_lshlrev_b32 v4, 3, v4\nv_add_u32 v3, v3, v4')
    for T in range(4):
        p(f'v_xor_b32 v4, {T}, v2\nv_lshlrev_b32 v4, 6, v4\nv_add_u32 {vT[T]}, v3, v4')
        p(f'v_add_u32 {vTH[T]}, 0x10000, {vT[T]}')
    for i in range(5):
        p(f'v_add_u32 v2, {64*i}, v0')
        p('v_mul_u32_u24 v3, 6554, v2\nv_lshrrev_b32 v3, 16, v3')
        p('v_mul_u32_u24 v4, 10, v3\nv_sub_u32 v4, v2, v4')
        p(f'v_mul_u32_u24 v3, 1280, v3\nv_lshlrev_b32 v4, 4, v4\nv_add_u32 {vWo5[i]}, v3, v4')
    p(f'v_lshrrev_b32 v2, 2, {vL15}\nv_lshlrev_b32 v3, 3, {vG4}\nv_add_u32 v2, v2, v3')
    p(f'v_and_b32 v3, 1, {vG4}\nv_lshlrev_b32 v3, 2, v3')
    p('v_add_u32 v4, v2, v3\nv_mul_u32_u24 v4, 160, v4')
    p('v_sub_u32 v5, 4, v3\nv_add_u32 v5, v2, v5\nv_mul_u32_u24 v5, 160, v5')
    p('v_and_b32 v3, 3, v0\nv_lshlrev_b32 v3, 3, v3')
    p(f'v_add_u32 {vA0}, v4, v3\nv_add_u32 {vA1}, v5, v3')
    p(f'v_lshlrev_b32 v2, 9, {vHH}\nv_lshlrev_b32 v3, 4, {vL15}\nv_add_u32 v2, v2, v3')
    p(f'v_and_b32 v3, 1, {vG4}\nv_lshlrev_b32 v3, 3, v3\nv_add_u32 {vXst}, v2, v3')
    p('s_waitcnt lgkmcnt(0)')
    w_prefetch()
    S = p.newlabel('w0skip')
    p(f's_cmp_lg_u32 {sW}, 0\ns_cbranch_scc1 {S}')
    p(f's_mov_b64 {sEX}, exec\ns_mov_b64 exec, 1')
    p('s_mov_b32 s80, s54\ns_mov_b32 s81, s55\ns_mov_b32 s82, 256\ns_mov_b32 s83, 0x20000')
    p(f'v_mov_b32 {vNonceOld}, 1\nv_mov_b32 v6, 0')
    p(f'buffer_atomic_add {vNonceOld}, v6, s[80:83], 0 offen sc0 sc1')
    S2 = p.newlabel('nz')
    p(f's_cmp_lg_u32 {sJ}, 0\ns_cbranch_scc1 {S2}')
    p(f's_lshl_b32 s28, {sG}, 8\ns_add_u32 s28, s28, {WS_CNT}\nv_mov_b32 v6, s28\nv_mov_b32 v7, 0')
    p(f'buffer_store_dword v7, v6, {SRD_WS}, 0 offen sc1')
    p.label(S2)
    p(f's_mov_b64 exec, {sEX}')
    p.label(S)

def x_tail(first):
    for t in range(5):
        for q in range(2):
            src = f'v{16+2*t+q}'
            p(f'v_lshlrev_b32 v{32+4*t+2*q}, 16, {src}')
            p(f'v_and_b32 v{33+4*t+2*q}, 0xffff0000, {src}')
    for i in range(20):
        p(f'v_accvgpr_write_b32 a{RES+i}, v{32+i}')
    p(f's_lshl_b32 s28, {sG}, 2\ns_lshl_b32 s29, {sHALF}, 1\ns_add_u32 s28, s28, s29\ns_lshr_b32 s29, {sW}, 1\ns_add_u32 s28, s28, s29')
    p(f's_mul_i32 s28, s28, 40\ns_mul_i32 s29, {sCB}, 5\ns_add_u32 s28, s28, s29\ns_lshl_b32 s28, s28, 10')
    p(f's_and_b32 s29, {sW}, 1\ns_lshl_b32 s29, s29, 8\ns_add_u32 s28, s28, s29\ns_add_u32 s28, s28, s76')
    p('s_add_u32 s29, s28, 4096')
    for t in range(5):
        so, off = ('s28', t*1024) if t < 4 else ('s29', 0)
        p(f'buffer_store_dwordx2 {vr(16+2*t,2)}, {vXst}, {SRD_WS}, {so} offen offset:{off} sc1')
    p('v_mov_b32 v8, v32\nv_mul_f32 v9, v32, v32')
    for i in range(1, 20):
        p(f'v_add_f32 v8, v8, v{32+i}')
        p(f'v_fmac_f32 v9, v{32+i}, v{32+i}')
    swap16_add('v8', 'v10'); swap16_add('v9', 'v11')
    swap32_add('v8', 'v10'); swap32_add('v9', 'v11')
    p(f's_lshl_b32 s28, {sG}, 1\ns_add_u32 s28, s28, {sHALF}\ns_lshl_b32 s28, s28, 3\ns_add_u32 s28, s28, {sCB}\ns_lshl_b32 s28, s28, 9')
    p(f's_lshl_b32 s29, {sW}, 7\ns_add_u32 s28, s28, s29\ns_add_u32 s28, s28, s77')
    p(f'v_lshlrev_b32 v10, 3, {vL15}')
    p(f's_mov_b64 {sEX}, exec\ns_mov_b64 exec, 0xffff')
    p(f'buffer_store_dwordx2 v[8:9], v10, {SRD_WS}, s28 offen sc1')
    p(f's_mov_b64 exec, {sEX}')

def first_exchange():
    S = p.newlabel('f0skip')
    p('s_waitcnt vmcnt(0)')
    p('s_barrier')
    p(f's_cmp_lg_u32 {sW}, 0\ns_cbranch_scc1 {S}')
    p('s_add_u32 s24, s26, 1\ns_addc_u32 s25, s27, 0')
    p(f's_lshl_b32 s28, {sG}, 7\ns_add_u32 s28, s28, {WS_F0}')
    p(f's_lshl_b32 s29, {sJ}, 3\ns_add_u32 s29, s29, s28')
    p(f's_mov_b64 {sEX}, exec\ns_mov_b64 exec, 1')
    p('v_mov_b32 v6, s29\nv_mov_b32 v8, s24\nv_mov_b32 v9, s25')
    p(f'buffer_store_dwordx2 v[8:9], v6, {SRD_WS}, 0 offen sc1')
    p('s_mov_b64 exec, 0xffff')
    p(f'v_lshlrev_b32 v6, 3, v0\nv_add_u32 v6, s28, v6')
    poll_loop(f'buffer_load_dwordx2 v[8:9], v6, {SRD_WS}, 0 offen sc1',
              'v_cmp_ne_u64 vcc, s[24:25], v[8:9]\ns_cmp_eq_u64 vcc, 0')
    p(f's_mov_b64 exec, {sEX}')
    p.label(S)
    p('s_barrier')

ACC = 64
WA, WB = 128, 144
CSA = 160
XD = 12

def qkv_phase():
    p.c('================ QKV phase ================')
    stamp('qkv_start')
    p(f's_mul_i32 s76, {sL}, {XP_SZ}\ns_add_u32 s76, s76, {WS_XP}')
    p(f's_lshl_b32 s28, {sG}, 2\ns_add_u32 s28, s28, {sW}\ns_mul_i32 s28, s28, 40960\ns_add_u32 s76, s76, s28')
    p(f's_lshl_b32 s77, {sL}, 17\ns_add_u32 s77, s77, {WS_ST}')
    p(f's_lshl_b32 s28, {sG}, 1\ns_lshr_b32 s29, {sW}, 1\ns_add_u32 s28, s28, s29\ns_lshl_b32 s28, s28, 12\ns_add_u32 s77, s77, s28')
    p(f's_and_b32 s29, {sW}, 1\ns_lshl_b32 s29, s29, 8\ns_add_u32 s77, s77, s29')
    p(f'v_lshlrev_b32 v1, 3, {vL31}\nv_lshlrev_b32 v2, 11, {vHH}\nv_add_u32 v1, v1, v2')
    xtok = {}
    def xload(s):
        if s % 4 == 0 and s > 0: p('s_add_u32 s76, s76, 4096')
        p(f'buffer_load_dwordx4 {ar(4*s,4)}, {vL16}, {SRD_WS}, s76 offen offset:{(s%4)*1024} sc1')
        xtok[s] = p.vmtok()
    xload(0)
    for q in range(4):
        p(f'buffer_load_dwordx2 {vr(16+2*q,2)}, v1, {SRD_WS}, s77 offen offset:{q*512} sc1')
    for s in range(1, XD): xload(s)
    p(f's_cmp_lt_u32 {sL}, 2\ns_cselect_b32 {sCSW}, {sW}, 99')
    for T in range(4): p(f'v_mov_b32 v{CSA+T}, 0')
    p('v_mov_b32 v164, 0x3f803f80')
    p.wait_vm(xtok[0])
    p('s_barrier')
    stamp('qkv_x0')
    rtok = {}
    def wread(s, T):
        buf = WA if s % 2 == 0 else WB
        slot = (s // 4) % 8
        off = slot * 16384 + (s % 4) * 4096
        base = vT[T] if slot < 4 else vTH[T]
        off &= 0xffff
        p(f'ds_read_b64_tr_b16 {vr(buf+4*T,2)}, {base} offset:{off}')
        p(f'ds_read_b64_tr_b16 {vr(buf+4*T+2,2)}, {base} offset:{off+1024}')
        rtok[(s, T)] = p.lgtok()
    for T in range(4): wread(0, T)
    dmatok = None
    for s in range(40):
        buf = WA if s % 2 == 0 else WB
        p.wait_vm(xtok[s])
        if s == 31:
            p.wait_vm(dmatok)
            p('s_barrier')
        for T in range(4):
            p.wait_lg(rtok[(s, T)])
            c = vr(ACC+16*T, 16) if s > 0 else '0'
            p(f'v_mfma_f32_32x32x16_bf16 {vr(ACC+16*T,16)}, {vr(buf+4*T,4)}, {ar(4*s,4)}, {c}')
            if s + 1 < 40: wread(s + 1, T)
        if s + XD < 40: xload(s + XD)
        if 8 <= s < 16:
            n = s - 8
            st = 8 + n // 4; q = n % 4
            p(f's_mul_i32 s28, {sW}, {16*3840}\ns_add_u32 s28, s28, {(64*st+4*q)*3840}')
            p(f's_lshl_b32 s29, {sW}, 12\ns_add_u32 m0, s29, {(st-8)*16384 + q*1024}')
            p(f'buffer_load_dwordx4 {vWdma}, {SRD_W}, s28 offen lds')
            dmatok = p.vmtok()
        S = p.newlabel('cs')
        p(f's_cmp_lg_u32 {sCSW}, {s%4}\ns_cbranch_scc1 {S}')
        for T in range(4):
            for i in range(4):
                p(f'v_dot2c_f32_bf16 v{CSA+T}, v{buf+4*T+i}, v164')
        p.label(S)
        if s == 7: p('s_barrier')
    stamp('qkv_mfma_done')
    p('v_add_f32 v16, v16, v18\nv_add_f32 v17, v17, v19\nv_add_f32 v20, v20, v22\nv_add_f32 v21, v21, v23')
    p('v_add_f32 v16, v16, v20\nv_add_f32 v17, v17, v21')
    swap32_add('v16', 'v18'); swap32_add('v17', 'v19')
    p(f'v_mul_f32 v16, {hex(f2u(1/640))}, v16\nv_mul_f32 v17, {hex(f2u(1/640))}, v17')
    p('v_fma_f32 v17, -v16, v16, v17')
    p('v_max_f32 v17, 0, v17')
    p(f'v_add_f32 v17, {hex(f2u(1e-5))}, v17')
    p('v_rsq_f32 v18, v17')
    p('v_sub_f32 v20, 0, v16')
    p(f'v_mul_f32 v22, {hex(f2u(QSCALE))}, v18')
    S = p.newlabel('csr')
    p(f's_cmp_ge_u32 {sL}, 2\ns_cbranch_scc1 {S}')
    for T in range(4): swap32_add(f'v{CSA+T}', 'v1')
    p(f's_lshl_b32 s28, {sW}, 9\ns_add_u32 s28, s28, {LDS_CSP}')
    p(f'v_lshlrev_b32 v1, 2, {vL31}\nv_add_u32 v1, s28, v1')
    for T in range(4): p(f'ds_write_b32 v1, v{CSA+T} offset:{128*T}')
    p('s_waitcnt lgkmcnt(0)\ns_barrier')
    p(f's_and_b32 s28, {sW}, 1\ns_lshl_b32 s28, s28, 8')
    p(f'v_lshlrev_b32 v1, 2, v0\nv_add_u32 v1, s28, v1')
    p(f'v_add_u32 v2, {LDS_CSP}, v1')
    for w_ in range(4): p(f'ds_read_b32 v{4+w_}, v2 offset:{512*w_}')
    p('s_waitcnt lgkmcnt(0)')
    p('v_add_f32 v4, v4, v5\nv_add_f32 v6, v6, v7\nv_add_f32 v4, v4, v6')
    p(f's_lshl_b32 s28, {sL}, 9\ns_add_u32 s28, s28, {LDS_CS}\nv_add_u32 v1, s28, v1')
    p('ds_write_b32 v1, v4')
    p('s_waitcnt lgkmcnt(0)')
    p.label(S)
    p('s_barrier')
    p(f's_and_b32 s28, {sL}, 1\ns_lshl_b32 s28, s28, 9\ns_add_u32 s28, s28, {LDS_CS}')
    p(f'v_lshlrev_b32 v1, 4, {vHH}\nv_add_u32 v1, s28, v1')
    PK = {0: 128, 1: 130, 3: 132, 4: 134, 2: 136,
          5: 24, 6: 26, 8: 28, 9: 30, 7: 32,
          10: 36, 11: 38, 13: 40, 14: 42, 12: 44}
    ctok = {}
    def csread(P):
        p(f'ds_read_b128 {vr(168+4*(P%4),4)}, v1 offset:{P*32}')
        ctok[P] = p.lgtok()
    order = list(range(15))
    for P in order[:3]: csread(P)
    for idx, P in enumerate(order):
        if idx + 3 < 15: csread(order[idx + 3])
        p.wait_lg(ctok[P])
        c = 168 + 4 * (P % 4); a = ACC + 4 * P
        rr = 22 if P < 5 else 18
        for hlf in range(2):
            p(f'v_pk_fma_f32 {vr(a+2*hlf,2)}, v[20:21], {vr(c+2*hlf,2)}, {vr(a+2*hlf,2)} op_sel_hi:[0,1,1]')
            p(f'v_pk_mul_f32 {vr(a+2*hlf,2)}, {vr(a+2*hlf,2)}, {vr(rr,2)} op_sel_hi:[1,0]')
        p(f'v_cvt_pk_bf16_f32 v{PK[P]}, v{a}, v{a+1}')
        p(f'v_cvt_pk_bf16_f32 v{PK[P]+1}, v{a+2}, v{a+3}')
    p('v_mov_b32 v34, 0x3f803f80\nv_mov_b32 v35, 0\nv_mov_b32 v46, 0x3f80\nv_mov_b32 v47, 0')
    p(f'v_cndmask_b32 v140, 0, v136, {sHI}\nv_cndmask_b32 v141, 0, v137, {sHI}')
    p(f'v_cndmask_b32 v136, 0, v136, {sLO}\nv_cndmask_b32 v137, 0, v137, {sLO}')
    p('v_mov_b32 v2, 0x3f80')
    p(f'v_mov_b32 v138, 0\nv_cndmask_b32 v139, 0, v2, {sLO}\nv_mov_b32 v142, 0\nv_cndmask_b32 v143, 0, v2, {sHI}')
    p(f's_lshl_b32 s28, {sW}, 9\ns_add_u32 s28, s28, 4096')
    p(f'v_lshlrev_b32 v2, 4, {vL31}\nv_add_u32 v2, s28, v2')
    p(f'v_mul_u32_u24 v3, {PLK}, {vHH}\nv_add_u32 v3, v3, v2')
    p(f'v_mul_u32_u24 v4, {PLV}, {vHH}\nv_add_u32 v4, v4, v2\nv_add_u32 v4, {VB0}, v4')
    p(f'v_mul_u32_u24 v5, {3*PLV}, {vHH}\nv_add_u32 v5, v5, v2\nv_add_u32 v5, {VB0+2*PLV}, v5')
    p('ds_write_b128 v3, v[24:27]')
    p(f'ds_write_b128 v3, v[28:31] offset:{2*PLK}')
    p(f'ds_write_b128 v3, v[32:35] offset:{4*PLK}')
    p('ds_write_b128 v4, v[36:39]')
    p(f'ds_write_b128 v4, v[40:43] offset:{3*PLV}')
    p('ds_write_b128 v5, v[44:47]')
    p(f's_mul_i32 s78, {sL}, {KV_SZ}\ns_add_u32 s78, s78, {WS_KV}')
    p(f's_lshl_b32 s28, {sG}, 4\ns_add_u32 s28, s28, {sJ}\ns_mul_i32 s28, s28, 24576\ns_add_u32 s28, s28, s78')
    p(f's_lshl_b32 s29, {sW}, 9\ns_add_u32 s28, s28, s29')
    p(f'v_lshlrev_b32 v2, 4, {vL31}\nv_lshlrev_b32 v3, 11, {vHH}\nv_add_u32 v3, v3, v2')
    p(f'v_mul_u32_u24 v4, {3*2048}, {vHH}\nv_add_u32 v4, v4, v2\nv_add_u32 v4, {2*2048}, v4')
    for (reg, vo, off) in ((24, 'v3', 0), (28, 'v3', 4096), (32, 'v3', 8192), (36, 'v3', 12288), (40, 'v3', 18432), (44, 'v4', 12288)):
        p(f's_add_u32 s29, s28, {off}')
        p(f'buffer_store_dwordx4 {vr(reg,4)}, {vo}, {SRD_WS}, s29 offen sc1')
    stamp('qkv_epi_done')

def kv_handoff(isB):
    p.c('---- KV handoff')
    nb = 2 if isB else 1
    S = p.newlabel('kvskip')
    p('s_waitcnt vmcnt(0) lgkmcnt(0)')
    p('s_barrier')
    p(f's_cmp_lg_u32 {sW}, 0\ns_cbranch_scc1 {S}')
    p(f's_add_u32 s24, {sL}, 2\ns_add_u32 s24, s26, s24\ns_addc_u32 s25, s27, 0')
    p(f's_lshl_b32 s28, {sG}, 4\ns_add_u32 s28, s28, {sJ}\ns_lshl_b32 s28, s28, 7\ns_add_u32 s28, s28, {WS_FKV}')
    p(f's_mov_b64 {sEX}, exec\ns_mov_b64 exec, 1')
    p('v_mov_b32 v6, s28\nv_mov_b32 v8, s24\nv_mov_b32 v9, s25')
    p(f'buffer_store_dwordx2 v[8:9], v6, {SRD_WS}, 0 offen sc1')
    S2 = p.newlabel('kvnp')
    p(f's_min_u32 s29, {sG}, {nb}\ns_cmp_eq_u32 s29, 0\ns_cbranch_scc1 {S2}')
    p('s_lshl_b32 s30, 1, s29\ns_sub_u32 s30, s30, 1\ns_mov_b32 s31, 0\ns_mov_b64 exec, s[30:31]')
    p('v_add_u32 v7, 1, v0\nv_lshlrev_b32 v7, 11, v7\nv_sub_u32 v6, s28, v7')
    poll_loop(f'buffer_load_dwordx2 v[8:9], v6, {SRD_WS}, 0 offen sc1',
              'v_cmp_ne_u64 vcc, s[24:25], v[8:9]\ns_cmp_eq_u64 vcc, 0')
    p.label(S2)
    p(f's_mov_b64 exec, {sEX}')
    p.label(S)
    p('s_barrier')
    stamp('kv_flag')
    p(f's_cmp_lt_u32 {sW}, 2')
    p(f's_mov_b32 s31, {PLV}\ns_cmp_lt_u32 {sW}, 2\ns_cselect_b32 s31, {PLK}, s31')
    p(f's_mul_i32 s32, {sW}, {3*PLK}\ns_sub_u32 s33, {sW}, 2\ns_mul_i32 s33, s33, {3*PLV}\ns_add_u32 s33, s33, {VB0}')
    p(f's_cmp_lt_u32 {sW}, 2\ns_cselect_b32 s32, s32, s33')
    blocks = [(1, 128, (0, 1)), (2, 0, (0, 1))] if isB else [(1, 128, (1,))]
    for (d, pos0, qs) in blocks:
        F = p.newlabel('fill'); E = p.newlabel('fend')
        p(f's_cmp_lt_u32 {sG}, {d}\ns_cbranch_scc1 {F}')
        p(f's_sub_u32 s28, {sG}, {d}\ns_lshl_b32 s28, s28, 4\ns_add_u32 s28, s28, {sJ}\ns_mul_i32 s28, s28, 24576\ns_add_u32 s28, s28, s78')
        p(f's_mul_i32 s29, {sW}, {3*2048}\ns_add_u32 s28, s28, s29')
        p('s_mov_b32 s34, s32')
        for i in range(3):
            for q in qs:
                p(f's_add_u32 m0, s34, {pos0*16}')
                p(f'buffer_load_dwordx4 {vL16}, {SRD_WS}, s28 offen offset:{q*1024} sc1 lds')
            if i < 2: p('s_add_u32 s28, s28, 2048\ns_add_u32 s34, s34, s31')
        p(f's_branch {E}')
        p.label(F)
        p('v_mov_b32 v8, 0\nv_mov_b32 v9, 0\nv_mov_b32 v10, 0')
        p(f'v_add_u32 v6, s32, {vL16}')
        for i in range(3):
            if i >= 1:
                p(f's_cmp_eq_u32 {sW}, 1\ns_cselect_b32 s35, 0xF149, 0')
            else:
                p('s_mov_b32 s35, 0')
            p('v_mov_b32 v11, s35')
            for q in qs:
                p(f'ds_write_b128 v6, v[8:11] offset:{(pos0 + 64*q)*16}')
            if i < 2: p('v_add_u32 v6, s31, v6')
        p.label(E)

SB = [16, 32, 48]
OA = 64
PB = [80, 88]
MD, MO = 144, 160
def make_masks(isB):
    p(f'v_lshlrev_b32 v1, 2, {vHH}\nv_sub_u32 v1, {vL31}, v1')
    p(f'v_mov_b32 v2, {hex(NEGBIG)}')
    for r in range(16):
        kk = 8 * (r // 4) + (r % 4)
        if isB:
            p(f'v_cmp_le_i32 s[80:81], {kk}, v1')
            p('s_nop 1')
            p(f'v_cndmask_b32 v{MD+r}, v2, 0, s[80:81]')
            p(f'v_cndmask_b32 v{MO+r}, 0, v2, s[80:81]')
        else:
            for (M, add) in ((MD, 0), (MO, 32)):
                p(f'v_add_u32 v3, {add - kk + 64}, v1\nv_subrev_u32 v3, 64, v3')
                p('v_and_b32 v4, 0xfffffff1, v3')
                p('v_cmp_eq_u32 s[80:81], 0, v4')
                p('s_nop 1')
                p(f'v_cndmask_b32 v{M+r}, v2, 0, s[80:81]')

def attention(isB):
    p.c('================ attention ' + ('B' if isB else 'A'))
    tiles = list(range(9)) if isB else [7, 8]
    nt = len(tiles)
    def cmask(t):
        if t == 8: return vr(MD, 16)
        if t == tiles[0]: return vr(MO, 16)
        return '0'
    make_masks(isB)
    p('s_waitcnt vmcnt(0) lgkmcnt(0)')
    p('s_barrier')
    stamp('kv_loaded')
    p(f's_lshl_b32 s28, {sW}, 9')
    p(f'v_lshlrev_b32 v2, 4, {vL31}\nv_add_u32 v2, s28, v2')
    p(f'v_mul_u32_u24 v3, {PLK}, {vHH}\nv_add_u32 v3, v3, v2')
    p(f'v_add_u32 v4, {4*PLK}, v2')
    p(f'v_and_b32 v5, 1, {vG4}\nv_lshrrev_b32 v6, 1, v0\nv_and_b32 v6, 1, v6')
    p('v_cmp_eq_u32 vcc, 1, v5')
    p('v_mov_b32 v7, 2\nv_cndmask_b32 v6, v6, v7, vcc')
    p(f'v_mul_u32_u24 v6, {PLV}, v6')
    p(f'v_lshlrev_b32 v7, 2, {vHH}\nv_lshrrev_b32 v8, 2, {vL15}\nv_add_u32 v7, v7, v8\nv_lshlrev_b32 v7, 4, v7')
    p('v_and_b32 v8, 1, v0\nv_lshlrev_b32 v8, 3, v8')
    p(f'v_add_u32 v6, v6, v7\nv_add_u32 v6, v6, v8\ns_add_u32 s28, s28, {VB0}\nv_add_u32 v5, s28, v6')
    p(f'v_lshrrev_b32 v6, 4, {vL31}\nv_mul_u32_u24 v6, 20480, v6\nv_lshlrev_b32 v7, 4, {vL15}\nv_add_u32 v6, v6, v7\nv_lshlrev_b32 v7, 8, {vHH}\nv_add_u32 v9, v6, v7')
    p('v_mov_b32 v10, v6')
    p(f's_mul_i32 s79, {sL}, {XP_SZ}\ns_add_u32 s79, s79, {WS_OP}')
    p(f's_lshl_b32 s28, {sG}, 3\ns_lshl_b32 s29, {sW}, 1\ns_add_u32 s28, s28, s29\ns_mul_i32 s28, s28, 20480\ns_add_u32 s79, s79, s28')
    p(f's_mul_i32 s28, {sJ}, 1280\ns_add_u32 s79, s79, s28')
    for hd in range(2):
        QF0 = 128 + 4 * hd; QF1 = 136 + 4 * hd
        act = sLO if hd == 0 else sHI
        koff = hd * 2 * PLK; kboff = hd * PLK; voff = hd * 3 * PLV
        ktok = {}
        for i, t in enumerate(tiles):
            p(f'ds_read_b128 {ar(8*i,4)}, v3 offset:{koff + t*512}')
            p(f'ds_read_b128 {ar(8*i+4,4)}, v4 offset:{kboff + t*512}')
            ktok[i] = p.lgtok()
        def qk(i):
            sb = SB[i % 3]
            p(f'v_mfma_f32_32x32x16_bf16 {vr(sb,16)}, {ar(8*i,4)}, {vr(QF0,4)}, {cmask(tiles[i])}')
            p(f'v_mfma_f32_32x32x16_bf16 {vr(sb,16)}, {ar(8*i+4,4)}, {vr(QF1,4)}, {vr(sb,16)}')
        p(f'v_mov_b32 v{QF1+2}, 0')
        p('v_mov_b32 v11, 0xff7fffff')
        def mx(i):
            sb = SB[i % 3]
            for r in range(8): p(f'v_max3_f32 v11, v11, v{sb+2*r}, v{sb+2*r+1}')
        for i in range(nt):
            p.wait_lg(ktok[i])
            qk(i)
            if i >= 2: mx(i - 2)
        for i in range(max(0, nt - 2), nt): mx(i)
        p('v_mov_b32 v12, v11\nv_permlane32_swap_b32 v11, v12\nv_max_f32 v11, v11, v12')
        p('v_and_b32 v12, 0xffff0000, v11\nv_sub_f32 v13, v11, v12')
        p('v_cvt_pk_bf16_f32 v12, -v12, -v13')
        p(f'v_cndmask_b32 v{QF1+2}, 0, v12, {act}')
        vtok = {}
        def vread(i):
            t = tiles[i]; b = 72 + 8 * (i % 2)
            for mh in range(2):
                for u in range(2):
                    p(f'ds_read_b64_tr_b16 {ar(b+4*mh+2*u,2)}, v5 offset:{voff + t*512 + mh*256 + u*128}')
            vtok[i] = p.lgtok()
        vread(0)
        qk(0)
        if nt > 1: qk(1)
        for i in range(nt):
            if i + 2 < nt: qk(i + 2)
            if i + 1 < nt: vread(i + 1)
            sb = SB[i % 3]; pb = PB[i % 2]
            for r in range(16): p(f'v_exp_f32 v{sb+r}, v{sb+r}')
            for r in range(8): p(f'v_cvt_pk_bf16_f32 v{pb+r}, v{sb+2*r}, v{sb+2*r+1}')
            p.wait_lg(vtok[i])
            b = 72 + 8 * (i % 2)
            c = vr(OA, 16) if i > 0 else '0'
            p(f'v_mfma_f32_32x32x16_bf16 {vr(OA,16)}, {ar(b,4)}, {vr(pb,4)}, {c}')
            p(f'v_mfma_f32_32x32x16_bf16 {vr(OA,16)}, {ar(b+4,4)}, {vr(pb+4,4)}, {vr(OA,16)}')
        p(f'v_mov_b32 v12, v{OA+8}\nv_mov_b32 v13, v{OA+8}')
        p('v_permlane32_swap_b32 v12, v13')
        p('v_rcp_f32 v12, v13')
        for r in range(12): p(f'v_mul_f32 v{OA+r}, v12, v{OA+r}')
        for r in range(4): p(f'v_cvt_pk_bf16_f32 v{96+r}, v{OA+2*r}, v{OA+2*r+1}')
        mid = 104 + 2 * hd
        p(f'v_cvt_pk_bf16_f32 v{mid}, v{OA+8}, v{OA+9}\nv_cvt_pk_bf16_f32 v{mid+1}, v{OA+10}, v{OA+11}')
        sw = sSW0 if hd == 0 else sSW1
        p(f's_mov_b64 {sEX}, exec\ns_mov_b64 exec, {sw}')
        p('v_swap_b32 v96, v98\nv_swap_b32 v97, v99')
        p(f's_mov_b64 exec, {sEX}')
        p(f'buffer_store_dwordx4 v[96:99], v9, {SRD_WS}, s79 offen offset:{0 if hd == 0 else 768} sc1')
        p('s_nop 1')
    p(f's_mov_b64 {sEX}, exec\ns_mov_b64 exec, {sJODD}')
    p('v_swap_b32 v104, v106\nv_swap_b32 v105, v107')
    p(f's_mov_b64 exec, {sLO}')
    p(f'buffer_store_dwordx4 v[104:107], v10, {SRD_WS}, s79 offen offset:512 sc1')
    p(f's_mov_b64 exec, {sEX}')
    stamp('attn_done')

def outproj():
    p.c('================ out-proj')
    stamp('op_start')
    OACC = 64
    p(f's_mul_i32 s76, {sL}, {XP_SZ}\ns_add_u32 s76, s76, {WS_OP}')
    p(f's_lshl_b32 s28, {sG}, 3\ns_lshl_b32 s29, {sHALF}, 2\ns_add_u32 s28, s28, s29\ns_add_u32 s28, s28, {sW}\ns_mul_i32 s28, s28, 20480\ns_add_u32 s76, s76, s28')
    otok = {}
    for st in range(20):
        if st % 4 == 0 and st > 0: p('s_add_u32 s76, s76, 4096')
        p(f'buffer_load_dwordx4 {ar(4*st,4)}, {vL16}, {SRD_WS}, s76 offen offset:{(st%4)*1024} sc1')
        otok[st] = p.vmtok()
    p(f'v_add_u32 v1, {12*5120}, {vA0}\nv_add_u32 v2, {12*5120}, {vA1}')
    p.wait_vm(otok[0])
    p('s_barrier')
    stamp('op_o0')
    rtok = {}
    WF = [128, 148]
    def aread(st, t):
        b = WF[st % 2] + 4 * t
        a0, a1 = (vA0, vA1) if st < 12 else ('v1', 'v2')
        off = (st if st < 12 else st - 12) * 5120 + 32 * t
        p(f'ds_read_b64_tr_b16 {vr(b,2)}, {a0} offset:{off}')
        p(f'ds_read_b64_tr_b16 {vr(b+2,2)}, {a1} offset:{off}')
        rtok[(st, t)] = p.lgtok()
    for t in range(5): aread(0, t)
    for st in range(20):
        p.wait_vm(otok[st])
        for t in range(5):
            p.wait_lg(rtok[(st, t)])
            c = vr(OACC+4*t, 4) if st > 0 else '0'
            p(f'v_mfma_f32_16x16x32_bf16 {vr(OACC+4*t,4)}, {vr(WF[st%2]+4*t,4)}, {ar(4*st,4)}, {c}')
            if st + 1 < 20: aread(st + 1, t)
    stamp('op_mfma_done')
    for i in range(20): p(f'v_accvgpr_read_b32 v{32+i}, a{RES+i}')
    for i in range(20): p(f'v_add_f32 v{32+i}, v{32+i}, v{OACC+i}')
    for i in range(10): p(f'v_cvt_pk_bf16_f32 v{16+i}, v{32+2*i}, v{33+2*i}')

def final_store():
    p('s_mov_b32 s16, s52\ns_mov_b32 s17, s53\ns_mov_b32 s18, 2621440\ns_mov_b32 s19, 0x20000')
    p(f'v_mul_u32_u24 v1, 1280, {vL15}\nv_lshlrev_b32 v2, 3, {vG4}\nv_add_u32 v1, v1, v2')
    p(f's_lshl_b32 s28, {sG}, 7\ns_lshl_b32 s29, {sHALF}, 6\ns_add_u32 s28, s28, s29\ns_lshl_b32 s29, {sW}, 4\ns_add_u32 s28, s28, s29')
    p(f's_mul_i32 s28, s28, 1280\ns_mul_i32 s29, {sCB}, 160\ns_add_u32 s28, s28, s29')
    for t in range(5):
        p(f'buffer_store_dwordx2 {vr(16+2*t,2)}, v1, {SRD_IO}, s28 offen offset:{32*t}')
    S = p.newlabel('nonce')
    p(f's_cmp_lg_u32 {sW}, 0\ns_cbranch_scc1 {S}')
    p('s_waitcnt vmcnt(0)')
    p(f'v_readfirstlane_b32 s28, {vNonceOld}')
    p(f's_cmp_lg_u32 s28, 255\ns_cbranch_scc1 {S}')
    p('s_add_u32 s24, s26, 64\ns_addc_u32 s25, s27, 0')
    p('s_mov_b64 exec, 1')
    p('v_mov_b32 v6, 0\nv_mov_b32 v8, s24\nv_mov_b32 v9, s25')
    p(f'buffer_store_dwordx2 v[8:9], v6, {SRD_WS}, 0 offen sc1')
    p.label(S)

def main():
    prologue()
    p('s_waitcnt vmcnt(0)')
    p(f's_mov_b32 s76, {WS_XP}\ns_mov_b32 s77, {WS_ST}')
    x_tail(True)
    first_exchange()
    p.label('L_layer')
    stamp_idx[0] = 0
    qkv_phase()
    LA = 'L_attnA'; LJ = 'L_attn_done'
    p(f's_bitcmp1_b32 {sL}, 0\ns_cbranch_scc0 {LA}')
    i0 = stamp_idx[0]
    kv_handoff(True); attention(True)
    p(f's_branch {LJ}')
    p.label(LA)
    stamp_idx[0] = i0; n0 = len(stamp_names)
    kv_handoff(False); attention(False)
    del stamp_names[n0:]
    p.label(LJ)
    p('s_waitcnt lgkmcnt(0)')
    p('s_barrier')
    stok = p.vmtok()
    wo_prefetch()
    p('s_waitcnt vmcnt(0)')
    group_exchange()
    outproj()
    p(f's_cmp_eq_u32 {sL}, 3\ns_cbranch_scc1 L_final')
    p(f's_add_u32 {sL}, {sL}, 1')
    p(f's_mul_i32 s76, {sL}, {XP_SZ}\ns_add_u32 s76, s76, {WS_XP}')
    p(f's_lshl_b32 s77, {sL}, 17\ns_add_u32 s77, s77, {WS_ST}')
    x_tail(False)
    set_weight_srds()
    p('s_waitcnt lgkmcnt(0)')
    p('s_barrier')
    w_prefetch()
    p('s_waitcnt vmcnt(0)')
    group_exchange()
    p('s_branch L_layer')
    p.label('L_final')
    final_store()
    p.label('L_end')
    p('s_endpgm')

main()
body = p.finalize(verbose=True)
hdr = open('cdna_kernels/' + NAME + '.s.ref').read().split('\n')
top = [l for l in hdr if l.startswith(';') and '@launch' not in l and 'Override launch' not in l and 'grid=(ceil' not in l]
out = top + [f'; @launch grid=(256,1,1) block=(256,1,1) lds={LDS_TOTAL}',
             '.amdgcn_target "amdgcn-amd-amdhsa--gfx950"', '.text', f'.globl {NAME}_kernel', '.p2align 8',
             f'.type {NAME}_kernel,@function', f'{NAME}_kernel:']
out += body
out += ['.section .rodata,"a"', '.p2align 6', f'.amdhsa_kernel {NAME}_kernel',
        '  .amdhsa_next_free_vgpr 512', '  .amdhsa_next_free_sgpr 102', '  .amdhsa_accum_offset 256',
        '  .amdhsa_group_segment_fixed_size 0', '  .amdhsa_kernarg_size 72', '  .amdhsa_user_sgpr_count 2',
        '  .amdhsa_user_sgpr_kernarg_segment_ptr 1', '  .amdhsa_system_sgpr_workgroup_id_x 1', '.end_amdhsa_kernel', '']
dst = sys.argv[1] if len(sys.argv) > 1 and not sys.argv[1].startswith('--') else 'cdna_kernels/' + NAME + '.s'
open(dst, 'w').write('\n'.join(out))
if STAMPS: open(dst + '.stamps', 'w').write('\n'.join(stamp_names))
print('wrote', dst, len(out), 'lines')
```
